```python
import torch

def _softmax(x, axis=-1):
    return torch.softmax(x, dim=axis)
def _gelu(x):
    return torch.nn.functional.gelu(x, approximate="tanh")
def _silu(x):
    return torch.nn.functional.silu(x)
def _sigmoid(x):
    return torch.sigmoid(x)
def _layernorm(x, axis=-1, eps=1e-5):
    m = x.mean(dim=axis, keepdim=True)
    v = x.var(dim=axis, keepdim=True, unbiased=False)
    return (x - m) / torch.sqrt(v + eps)
def _scatter_add(tgt, idx, src, axis=0):
    return tgt.clone().index_add_(axis, idx, src)
def _segment_sum(src, seg, n):
    out = torch.zeros((n,) + src.shape[1:], dtype=src.dtype)
    return out.index_add_(0, seg, src)
def _pad(x, pw):
    flat = tuple(v for pair in reversed(pw) for v in pair)
    return torch.nn.functional.pad(x, flat)

kernel_name = 'standalone__window_attn_swin__vision'

def setup_inputs():

    _w = (lambda a: (lambda t: t.to(torch.bfloat16) if t.is_floating_point() else t)(torch.as_tensor(a)))
    H = W = 256
    C = 384
    ws = 8
    nh = 4
    shift = ws // 2
    coords = torch.stack(torch.meshgrid(torch.arange(ws), torch.arange(ws), indexing='ij'), 0).reshape(2, -1)
    rel = coords[:, :, None] - coords[:, None, :]
    rel[0] += ws - 1
    rel[1] += ws - 1
    rel[0] *= 2 * ws - 1
    rp_idx = rel.sum(0).to(torch.int64)
    img_mask = torch.zeros((1, H, W, 1), dtype=float)
    cnt = 0
    for hs in (slice(0, H - ws), slice(H - ws, H - shift), slice(H - shift, H)):
        for vs in (slice(0, W - ws), slice(W - ws, W - shift), slice(W - shift, W)):
            img_mask[:, hs, vs, :] = cnt
            cnt += 1
    mw = img_mask.reshape(1, H // ws, ws, W // ws, ws, 1).permute(0, 1, 3, 2, 4, 5).reshape(-1, ws * ws)
    am = mw[:, :, None] - mw[:, None, :]
    attn_mask = torch.where(am != 0, -100.0, 0.0).to(float)
    return {
        "x": _w((lambda *s: torch.randn(*s, dtype=torch.bfloat16) * 1.6)(1, H, W, C)),
        "wqkv": _w((lambda *s: torch.randn(*s, dtype=torch.bfloat16) * 1.6)(C, 3 * C) * 0.02),
        "wo": _w((lambda *s: torch.randn(*s, dtype=torch.bfloat16) * 0.05)(C, C) * 0.02),
        "rpb": _w((lambda *s: torch.randn(*s, dtype=torch.bfloat16) * 0.2)((2 * ws - 1) * (2 * ws - 1), nh)),
        "rp_idx": _w(rp_idx),
        "attn_mask": _w(attn_mask),
    }

def reference(x, wqkv, wo, rpb, rp_idx, attn_mask):
    B, H, W, C = x.shape
    N = rp_idx.shape[0]
    ws = int(round(N ** 0.5))
    nh = rpb.shape[-1]
    hd = C // nh
    shift = ws // 2
    xs = torch.roll(x, (-shift, -shift), (1, 2))
    nWh = H // ws
    nWw = W // ws
    xw = (lambda x, *d: x.permute(*d))(xs.reshape(B, nWh, ws, nWw, ws, C), 0, 1, 3, 2, 4, 5).reshape(B * nWh * nWw, N, C)
    qkv = (lambda x, *d: x.permute(*d))(torch.einsum('wnc,cd->wnd', xw, wqkv).reshape(-1, N, 3, nh, hd), 2, 0, 3, 1, 4)
    q, k, v = qkv[0], qkv[1], qkv[2]
    attn = torch.einsum('whid,whjd->whij', q, k) * (hd ** -0.5)
    bias = (lambda x, *d: x.permute(*d))(rpb[rp_idx.reshape(-1)].reshape(N, N, nh), 2, 0, 1)
    attn = attn + bias[None, :, :, :]
    attn = (attn.reshape(B, nWh * nWw, nh, N, N) + attn_mask[None, :, None, :, :]).reshape(-1, nh, N, N)
    attn = _softmax(attn, axis=-1)
    out = (lambda x, *d: x.permute(*d))(torch.einsum('whij,whjd->whid', attn, v), 0, 2, 1, 3).reshape(-1, N, C)
    out = torch.einsum('wnc,cd->wnd', out, wo)
    out = (lambda x, *d: x.permute(*d))(out.reshape(B, nWh, nWw, ws, ws, C), 0, 1, 3, 2, 4, 5).reshape(B, H, W, C)
    return torch.roll(out, (shift, shift), (1, 2))
```

```python
import math, heapq

class VR:
    n = 0
    def __init__(s, name, size, file='v', fixed=None):
        s.name, s.size, s.file, s.fixed = name, size, file, fixed
        s.phys = fixed
        s.id = VR.n; VR.n += 1
        s.first = None; s.last = None
    def __getitem__(s, i):
        if isinstance(i, slice):
            return Ref(s, i.start or 0, (i.stop if i.stop is not None else s.size) - (i.start or 0))
        return Ref(s, i, 1)
    def all(s): return Ref(s, 0, s.size)
    def __repr__(s): return f"<{s.file}:{s.name}>"

class Ref:
    __slots__ = ('vr', 'off', 'n')
    def __init__(s, vr, off, n):
        assert 0 <= off and off + n <= vr.size, (vr, off, n)
        s.vr, s.off, s.n = vr, off, n
    def keys(s): return [(s.vr.id, s.off + i) for i in range(s.n)]
    def text(s):
        p = s.vr.phys
        assert p is not None, s.vr
        a = p + s.off
        return f"{s.vr.file}{a}" if s.n == 1 else f"{s.vr.file}[{a}:{a+s.n-1}]"
    def phys(s): return [(s.vr.file, s.vr.phys + s.off + i) for i in range(s.n)]

def R(x): return x.all() if isinstance(x, VR) else x

VEC = ('valu', 'trans', 'perm', 'ds', 'dsw', 'vmem')
VALU = ('valu', 'trans', 'perm')
MEM = ('ds', 'dsw', 'vmem')

class Ins:
    cnt = 0
    def __init__(s, kind, fmt, ops=(), defs=(), uses=(), cdef=None, **kw):
        s.kind, s.fmt = kind, fmt
        s.ops = [R(o) if isinstance(o, (VR, Ref)) else o for o in ops]
        s.defs = [R(d) for d in defs]; s.uses = [R(u) for u in uses]
        s.cdef = R(cdef) if cdef is not None else None
        s.preds = {}
        s.succs = []
        s.release = kw.get('release', -1)
        s.gap = kw.get('gap')
        s.needs = kw.get('needs')
        s.tag = kw.get('tag', '')
        s.store = kw.get('store', False)
        s.prio = kw.get('prio', 0)
        s.m0 = kw.get('m0', False)
        s.pos = None; s.deadline = None
        s.lidx = Ins.cnt; Ins.cnt += 1
    def text(s):
        if callable(s.fmt): return s.fmt(s)
        return s.fmt.format(*[o.text() if isinstance(o, Ref) else o for o in s.ops])
    def __repr__(s): return f"Ins#{s.lidx}({s.kind},{s.tag})"

def hazard(p, c, kind):
    if kind == 'RAW' or kind == 'RAWC':
        if p.kind == 'mfma':
            if c.kind == 'mfma':
                return 0 if kind == 'RAWC' else 8
            return 8
        if p.kind in VALU:
            if c.kind == 'mfma': return 2
            if c.kind == 'perm': return 2
            if p.kind == 'trans' and c.kind in VALU: return 1
            return 0
        return 0
    if kind == 'WAW':
        if p.kind == 'mfma':
            return 0 if c.kind == 'mfma' else 8
        return 0
    if kind == 'WAR':
        if p.kind == 'mfma' and c.kind in VALU: return 3
        if p.kind == 'vmem' and p.store: return 2
        return 0

class Prog:
    def __init__(s):
        s.ins = []
        s.backbone = []
        s.lastw = {}; s.readers = {}
        s.pre = {}
        s.head = []
        s.tail = []
    def _dep(s, i):
        for u in i.uses:
            isC = i.cdef is not None and u is i.cdef
            for k in u.keys():
                w = s.lastw.get(k)
                if w is not None and w is not i:
                    same = False
                    if isC and w.kind == 'mfma':
                        d = w.defs[0]; same = (d.vr is u.vr and d.off == u.off and d.n == u.n)
                    h = hazard(w, i, 'RAWC' if same else 'RAW')
                    i.preds[w] = max(i.preds.get(w, 0), h)
                s.readers.setdefault(k, []).append(i)
        for d in i.defs:
            for k in d.keys():
                w = s.lastw.get(k)
                if w is not None and w is not i:
                    i.preds[w] = max(i.preds.get(w, 0), hazard(w, i, 'WAW'))
                for r in s.readers.get(k, []):
                    if r is not i:
                        i.preds[r] = max(i.preds.get(r, 0), hazard(r, i, 'WAR'))
                s.lastw[k] = i; s.readers[k] = []
    def add(s, i, after=()):
        s._dep(i)
        for a in after: i.preds[a] = max(i.preds.get(a, 0), 0)
        s.ins.append(i)
        if i.kind == 'mfma':
            i.bidx = len(s.backbone); s.backbone.append(i)
        elif i.gap is not None:
            s.pre.setdefault(i.gap, []).append(i)
        return i
    def pin_head(s, i):
        s._dep(i); s.head.append(i); return i
    def pin_tail(s, i):
        s._dep(i); s.tail.append(i); return i
    @property
    def nb(s): return len(s.backbone)

class Gap:
    def __init__(s): s.t = 4; s.valu = False; s.n = 0
    def cost(s, i):
        if i.kind in VEC:
            t0 = max(s.t, 8)
            d = 8 if i.kind == 'trans' else (8 if i.kind == 'vmem' else 4)
            if i.kind in MEM and s.valu: t0 += 8
            return t0 + d
        return s.t + 4
    def fits(s, i): return s.cost(i) <= 16
    def add(s, i):
        s.t = s.cost(i); s.n += 1
        if i.kind in VALU: s.valu = True

def schedule(P, verbose=True):
    nb = len(P.backbone)
    for i in P.ins:
        for p in i.preds: p.succs.append(i)
    INF = 1e9
    for i in reversed(P.ins):
        if i.kind == 'mfma': d = i.bidx
        elif i.gap is not None: d = i.gap - 0.5
        else: d = INF
        for c in i.succs:
            cd = c.deadline if c.deadline is not None else INF
            lat = 0.5 + i_lat(i, c)
            d = min(d, cd - lat)
        i.deadline = d
    out = []
    pos = 0
    done = set(id(x) for x in P.head)
    for h in P.head:
        h.pos = pos; pos += 1; out.append(h)
    floating = [i for i in P.ins if i.kind != 'mfma' and i.gap is None]
    npred = {id(i): sum(1 for p in i.preds if id(p) not in done) for i in P.ins}
    ready = []
    for i in floating:
        if npred[id(i)] == 0: heapq.heappush(ready, (i.deadline - i.prio, i.lidx, i))
    stats = dict(nops=0, forced=0, over=0)
    def haz_ok(i):
        for p, h in i.preds.items():
            if h and pos - p.pos - 1 < h: return False
        return True
    def haz_need(i):
        n = 0
        for p, h in i.preds.items():
            if h: n = max(n, h - (pos - p.pos - 1))
        return n
    def emit(i):
        nonlocal pos
        i.pos = pos; pos += 1; out.append(i); done.add(id(i))
        for c in i.succs:
            npred[id(c)] -= 1
            if npred[id(c)] == 0 and c.kind != 'mfma' and c.gap is None:
                heapq.heappush(ready, (c.deadline - c.prio, c.lidx, c))
    def nop(n):
        nonlocal pos
        while n > 0:
            k = min(n, 16)
            x = Ins('salu', f"s_nop {k-1}", tag='hz'); x.pos = pos; x.nopn = k
            out.append(x); pos += k
            stats['nops'] += k; n -= k
    def force(i, g):
        for p in sorted(i.preds, key=lambda p: p.lidx):
            if id(p) not in done:
                assert p.kind != 'mfma', (i, p, "depends on later mfma")
                assert p.gap is None, (i, p, "depends on later pre-placed")
                remove_ready(p); force(p, g); stats['forced'] += 1
        n = haz_need(i)
        if n > 0: nop(n)
        emit(i); g.add(i)
    def remove_ready(x):
        for k, e in enumerate(ready):
            if e[2] is x:
                ready[k] = ready[-1]; ready.pop(); heapq.heapify(ready); return
    def fill(g, k):
        skipped = []
        while ready:
            e = heapq.heappop(ready); i = e[2]
            if i.release > k or not haz_ok(i) or not g.fits(i):
                skipped.append(e)
                if len(skipped) > 40 or g.t >= 16: break
                continue
            emit(i); g.add(i)
            if g.t >= 16: break
        for e in skipped: heapq.heappush(ready, e)
    gapcost = []
    for k in range(nb + 1):
        g = Gap() if k > 0 else Gap()
        for i in P.pre.get(k, []):
            if any(id(p) not in done for p in i.preds) or haz_need(i) > 0:
                force(i, g)
            else:
                emit(i); g.add(i)
        if k < nb:
            fill(g, k)
            m = P.backbone[k]
            if any(id(p) not in done for p in m.preds):
                for p in sorted(m.preds, key=lambda p: p.lidx):
                    if id(p) not in done:
                        assert p.kind != 'mfma' and p.gap is None, (m, p)
                        remove_ready(p); force(p, g); stats['forced'] += 1
            n = haz_need(m)
            if n > 0: nop(n); g.t += 4 * n
            emit(m)
        else:
            while ready:
                e = heapq.heappop(ready); i = e[2]
                n = haz_need(i)
                if n > 0: nop(n)
                emit(i)
        gapcost.append(max(16, g.t))
        if g.t > 16: stats['over'] += g.t - 16
    left = [i for i in P.ins if id(i) not in done]
    assert not left, left[:5]
    for h in P.tail:
        n = haz_need(h)
        if n > 0: nop(n)
        h.pos = pos; pos += 1; out.append(h)
    if verbose:
        print(f"schedule: {len(out)} instrs, {nb} mfma, model cycles {sum(gapcost)}, stats {stats}")
    P.gapcost = gapcost
    return out

def i_lat(i, c):
    h = i.preds_h(c) if hasattr(i, 'preds_h') else c.preds.get(i, 0)
    l = h / 2.0
    if i.kind == 'trans': l += 0.5
    if i.kind == 'ds': l += 8
    return l

def insert_waits(out):
    dsn = 0; vmn = 0
    for i in out:
        if i.kind in ('ds', 'dsw'): dsn += 1; i.dsidx = dsn
        elif i.kind == 'vmem': vmn += 1; i.vmidx = vmn
        elif i.kind == 'wait':
            parts = []
            if i.needs is not None:
                nd = [x for x in i.needs if x.kind in ('ds', 'dsw')]
                nv = [x for x in i.needs if x.kind == 'vmem']
                for x in i.needs: assert x.pos < i.pos, (i, x)
                if nv: parts.append(f"vmcnt({min(63, vmn - max(x.vmidx for x in nv))})")
                if nd: parts.append(f"lgkmcnt({min(15, dsn - max(x.dsidx for x in nd))})")
                assert parts
                i.fmt = "s_waitcnt " + " ".join(parts)
                i.waited_ds = dsn - min(15, dsn - max(x.dsidx for x in nd)) if nd else None
                i.waited_vm = vmn - min(63, vmn - max(x.vmidx for x in nv)) if nv else None

def check_waits(out):
    ds_done = 0; vm_done = 0
    lastdef = {}
    for i in out:
        if i.kind == 'wait':
            if getattr(i, 'waited_ds', None) is not None: ds_done = max(ds_done, i.waited_ds)
            if getattr(i, 'waited_vm', None) is not None: vm_done = max(vm_done, i.waited_vm)
            if getattr(i, 'full', False):
                ds_done = max([ds_done] + [x.dsidx for x in out if x.kind in ('ds', 'dsw') and x.pos < i.pos])
                vm_done = max([vm_done] + [x.vmidx for x in out if x.kind == 'vmem' and x.pos < i.pos])
        for u in i.uses:
            for k in u.keys():
                w = lastdef.get(k)
                if w is None: raise Exception(f"use of undefined {u.vr} sub {k} in {i} {i.fmt}")
                if w.kind == 'ds': assert w.dsidx <= ds_done, ("missing lgkm wait", w, i)
                if w.kind == 'vmem': assert w.vmidx <= vm_done, ("missing vm wait", w, i)
        for d in i.defs:
            for k in d.keys():
                w = lastdef.get(k)
                lastdef[k] = i

def allocate(out, nv=256, na=256, margin=4, verbose=True, reserved_v=(), reserved_a=()):
    vrs = {}
    for i in out:
        for r in i.defs + i.uses:
            vr = r.vr; vrs[vr.id] = vr
            if vr.first is None: vr.first = i.pos
            vr.last = i.pos
    free_at = {'v': [0] * nv, 'a': [0] * na}
    for r in reserved_v: free_at['v'][r] = 1 << 30
    for r in reserved_a: free_at['a'][r] = 1 << 30
    order = sorted(vrs.values(), key=lambda v: v.first)
    for vr in order:
        if vr.fixed is not None:
            for k in range(vr.size):
                assert free_at[vr.file][vr.fixed + k] <= vr.first + margin or True
                free_at[vr.file][vr.fixed + k] = max(free_at[vr.file][vr.fixed + k], vr.last + margin)
    peak = {'v': 0, 'a': 0}
    for vr in order:
        if vr.fixed is not None: continue
        fa = free_at[vr.file]; n = len(fa)
        al = 4 if vr.size >= 4 else (2 if vr.size == 2 else 1)
        best = None
        if vr.size >= 4:
            cand = range(0, n - vr.size + 1, al)
        else:
            cand = range(n - al, -1, -al)
        for p in cand:
            if all(fa[p + k] <= vr.first for k in range(vr.size)):
                best = p; break
        if best is None:
            live = [v for v in order if v.phys is not None and v.file == vr.file and v.first <= vr.first <= v.last]
            from collections import Counter
            c = Counter()
            for v in live: c[v.name.split('_')[0]] += v.size
            raise Exception(f"out of {vr.file} registers at pos {vr.first} for {vr.name}: live {sum(v.size for v in live)}: {dict(c)}")
        vr.phys = best
        for k in range(vr.size): fa[best + k] = vr.last + margin
    ev = {'v': [], 'a': []}
    for vr in vrs.values():
        ev[vr.file].append((vr.first, vr.size)); ev[vr.file].append((vr.last + 1, -vr.size))
    for f in ev:
        c = 0
        for _, d in sorted(ev[f], key=lambda e: (e[0], e[1])):
            c += d; peak[f] = max(peak[f], c)
    mx = {f: max([v.phys + v.size for v in vrs.values() if v.file == f] + [0]) for f in 'va'}
    if verbose: print(f"allocate: peak live v={peak['v']} a={peak['a']}; highest v={mx['v']} a={mx['a']}")
    return mx

def check_hazards(out):
    seq = []
    p = 0
    for i in out:
        n = getattr(i, 'nopn', 1)
        seq.append((p, i)); p += n
    lastw = {}; lastr = {}
    bad = []
    for p, i in seq:
        isnop = hasattr(i, 'nopn')
        for u in i.uses:
            isC = i.cdef is not None and u is i.cdef
            for k in u.phys():
                w = lastw.get(k)
                if w is not None:
                    wp, wi = w
                    same = isC and wi.kind == 'mfma' and wi.defs[0].phys() == u.phys()
                    h = hazard(wi, i, 'RAWC' if same else 'RAW')
                    if p - wp - getattr(wi, 'nopn', 1) < h: bad.append(('RAW', wi, i, k, p - wp - 1, h))
        for d in i.defs:
            for k in d.phys():
                w = lastw.get(k)
                if w is not None:
                    wp, wi = w
                    h = hazard(wi, i, 'WAW')
                    if wi.kind == 'mfma' and i.kind == 'mfma' and not (i.cdef is not None and wi.defs[0].phys() == i.defs[0].phys()): h = 8
                    if p - wp - 1 < h: bad.append(('WAW', wi, i, k, p - wp - 1, h))
                for (rp, ri) in lastr.get(k, []):
                    if ri is i: continue
                    h = hazard(ri, i, 'WAR')
                    if p - rp - 1 < h: bad.append(('WAR', ri, i, k, p - rp - 1, h))
        for u in i.uses:
            for k in u.phys(): lastr.setdefault(k, []).append((p, i))
        for d in i.defs:
            for k in d.phys():
                lastw[k] = (p, i); lastr[k] = []
    return bad
```

```python
import sys, math, struct
sys.path.insert(0, "gen")
from core import *

def f2u(f): return struct.unpack("<I", struct.pack("<f", f))[0]

class Cfg:
    phase0 = False
    dump = None
    defer_pv3 = True
    prefetch_code = True
    x_nt = True
    chain = 4
CFG = Cfg()

SCALE = 96 ** -0.5
CEXP = SCALE * math.log2(math.e)
MASKV = -100.0 / SCALE
SLOT = 49152
BIAS_BASE = 3 * SLOT
LDS_BYTES = BIAS_BASE + 4096

S_X = 8
S_W = 12
S_WO = 16
S_OUT = 20
S_WS = 24
S_WAVE = 28; S_WV1K = 29; S_SOFF = 30; S_C = 31; S_NEGC = 32
S_ROW = 33; S_COL = 34
S_LASTROW = 35; S_LASTCOL = 36
S_WIN = 37
S_T = 40
S_PC = 50
S_RPB = 52

def srd(n): return f"s[{n}:{n+3}]"

class K:
    def __init__(s, cfg):
        s.cfg = cfg
        s.P = Prog()
        s.dumpidx = 0
        s.dumps = []
    def H(s, kind, fmt, ops=(), defs=(), uses=(), **kw):
        return s.P.pin_head(Ins(kind, fmt, ops, defs, uses, **kw))
    def raw(s, text):
        for l in text.strip().split("\n"):
            s.H('salu', l.strip())
    def A(s, kind, fmt, ops=(), defs=(), uses=(), after=(), **kw):
        return s.P.add(Ins(kind, fmt, ops, defs, uses, **kw), after)
    def valu(s, op, d, *src, pinned=False, kind='valu', inplace=False, **kw):
        ops = [d] + list(src)
        uses = [x for x in src if isinstance(x, (VR, Ref))]
        fmt = op + " " + ", ".join("{%d}" % i for i in range(len(ops)))
        if pinned: return s.H(kind, fmt, ops, [d], uses, **kw)
        return s.A(kind, fmt, ops, [d], uses, **kw)
    def new(s, name, size=1, file='v'): return VR(name, size, file)
    def perm(s, op, a, b, **kw):
        return s.A('perm', op + " {0}, {1}", [a, b], [a, b], [a, b], **kw)
    def mfma(s, D, A, B, C=None, tag=''):
        if C is None:
            return s.P.add(Ins('mfma', "v_mfma_f32_16x16x32_bf16 {0}, {1}, {2}, 0", [D, A, B], [D], [A, B], tag=tag))
        i = Ins('mfma', "v_mfma_f32_16x16x32_bf16 {0}, {1}, {2}, {3}", [D, A, B, C], [D], [A, B], tag=tag)
        c = R(C); i.uses.append(c); i.cdef = c
        return s.P.add(i)
    def free_gap(s, g):
        while any(x.kind in MEM for x in s.P.pre.get(g, [])) or any(x.kind == 'bar' for x in s.P.pre.get(g, [])): g += 1
        return g
    def dump(s, vr, tag):
        if not s.cfg.dump or tag.split(':')[0] not in s.cfg.dump: return
        idx = s.dumpidx; s.dumpidx += 1
        s.dumps.append(tag)
        so = s.new('dso', 1)
        i1 = s.A('salu', f"s_add_u32 s{S_T+9}, s{S_T+8}, {idx*1024}")
        i2 = s.A('vmem', "buffer_store_dwordx4 {0}, {1}, " + srd(S_WS) + f", s{S_T+9} offen", [R(vr), s.vdump], [], [R(vr), s.vdump], store=True, after=[i1] + ([s.lastdump] if getattr(s, 'lastdump', None) else []))
        i1.preds[s.lastdump] = 0 if getattr(s, 'lastdump', None) else None
        if None in i1.preds: pass
        i1.preds = {k: v for k, v in i1.preds.items() if v is not None and k is not None}
        s.lastdump = i2

    def lane_consts(s, pinned, release=-1):
        kw = dict(pinned=pinned) if pinned else dict(release=release)
        lane = s.new('lane');
        s.valu("v_mbcnt_lo_u32_b32", lane, "-1", "0", **kw)
        lane2 = s.new('lane')
        s.valu("v_mbcnt_hi_u32_b32", lane2, "-1", lane, **kw)
        return lane2
    def make_voff(s, pinned, release=-1):
        kw = dict(pinned=pinned) if pinned else dict(release=release)
        lane = s.lane_consts(pinned, release)
        n8 = s.new('t'); s.valu("v_and_b32", n8, "7", lane, **kw)
        col = s.new('t'); s.valu("v_add_u32", col, f"s{S_COL}", n8, **kw)
        col2 = s.new('t'); s.valu("v_and_b32", col2, "255", col, **kw)
        colb = s.new('t'); s.valu("v_mul_u32_u24", colb, "768", col2, **kw)
        g = s.new('t'); s.valu("v_lshrrev_b32", g, "4", lane, **kw)
        colg = s.new('t'); s.valu("v_lshl_add_u32", colg, g, "4", colb, **kw)
        yb = s.new('t'); s.valu("v_bfe_u32", yb, lane, "3", "1", **kw)
        row0 = s.new('t'); s.valu("v_add_u32", row0, f"s{S_ROW}", yb, **kw)
        voff = []
        for tt in range(4):
            r = s.new('t'); s.valu("v_add_u32", r, str(2*tt), row0, **kw)
            r2 = s.new('t'); s.valu("v_and_b32", r2, "255", r, **kw)
            r3 = s.new('t'); s.valu("v_mul_u32_u24", r3, "768", r2, **kw)
            v = s.new('voff'); s.valu("v_lshl_add_u32", v, r3, "8", colg, **kw)
            voff.append(v)
        return voff

    def prologue(s):
        cfg = s.cfg
        s.raw(f"""
        s_cmp_ge_u32 s2, 256
        s_cbranch_scc1 L_end
        s_load_dwordx4 s[40:43], s[0:1], 0
        s_load_dwordx4 s[44:47], s[0:1], 16
        s_load_dwordx2 s[48:49], s[0:1], 48
        s_load_dwordx2 s[56:57], s[0:1], 64
        """)
        v0 = VR('v0', 1, 'v', fixed=0)
        s.H('salu', "; v0 live-in {0}", [v0], [v0], [])
        wv = s.new('t'); s.valu("v_lshrrev_b32", wv, "6", v0, pinned=True)
        lane = s.new('lane'); s.valu("v_and_b32", lane, "63", v0, pinned=True)
        s.H('valu', f"v_readfirstlane_b32 s{S_WAVE}, {{0}}", [wv], [], [wv])
        s.raw(f"""
        s_nop 3
        s_lshl_b32 s{S_WV1K}, s{S_WAVE}, 10
        s_lshl_b32 s{S_WIN}, s2, 2
        s_add_u32 s{S_WIN}, s{S_WIN}, s{S_WAVE}
        s_lshr_b32 s38, s{S_WIN}, 5
        s_and_b32 s39, s{S_WIN}, 31
        s_lshl_b32 s{S_ROW}, s38, 3
        s_add_u32 s{S_ROW}, s{S_ROW}, 4
        s_lshl_b32 s{S_COL}, s39, 3
        s_add_u32 s{S_COL}, s{S_COL}, 4
        s_cmp_eq_u32 s38, 31
        s_cselect_b32 s{S_LASTROW}, -1, 0
        s_cmp_eq_u32 s39, 31
        s_cselect_b32 s{S_LASTCOL}, -1, 0
        s_mov_b32 s{S_C}, 0x{f2u(CEXP):08x}
        s_mov_b32 s{S_NEGC}, 0x{f2u(-CEXP):08x}
        s_waitcnt lgkmcnt(0)
        s_mov_b32 s{S_X}, s40
        s_mov_b32 s{S_X+1}, s41
        s_mov_b32 s{S_X+2}, 50331648
        s_mov_b32 s{S_X+3}, 0x20000
        s_mov_b32 s{S_W}, s42
        s_mov_b32 s{S_W+1}, s43
        s_mov_b32 s{S_W+2}, 884736
        s_mov_b32 s{S_W+3}, 0x20000
        s_mov_b32 s{S_WO}, s44
        s_mov_b32 s{S_WO+1}, s45
        s_mov_b32 s{S_WO+2}, 294912
        s_mov_b32 s{S_WO+3}, 0x20000
        s_mov_b32 s{S_RPB}, s46
        s_mov_b32 s{S_RPB+1}, s47
        s_mov_b32 s{S_RPB+2}, 1800
        s_mov_b32 s{S_RPB+3}, 0x20000
        s_mov_b32 s{S_OUT}, s48
        s_mov_b32 s{S_OUT+1}, s49
        s_mov_b32 s{S_OUT+2}, 50331648
        s_mov_b32 s{S_OUT+3}, 0x20000
        s_mov_b32 s{S_WS}, s56
        s_mov_b32 s{S_WS+1}, s57
        s_mov_b32 s{S_WS+2}, 0x10000000
        s_mov_b32 s{S_WS+3}, 0x20000
        """)
        pre_vm = []
        l8 = s.new('t'); s.valu("v_lshrrev_b32", l8, "3", lane, pinned=True)
        a = s.new('t'); s.valu("v_lshrrev_b32", a, "2", l8, pinned=True)
        b = s.new('t'); s.valu("v_and_b32", b, "3", l8, pinned=True)
        rl = s.new('t'); s.valu("v_lshl_add_u32", rl, a, "3", b, pinned=True)
        s.raw(f"""
        s_and_b32 s40, s{S_WAVE}, 1
        s_lshl_b32 s40, s40, 4
        s_lshr_b32 s41, s{S_WAVE}, 1
        s_lshl_b32 s41, s41, 2
        s_add_u32 s40, s40, s41
        s_lshl_b32 s41, s{S_WAVE}, 3
        """)
        rho = s.new('t'); s.valu("v_add_u32", rho, "s40", rl, pinned=True)
        up = s.new('t'); s.valu("v_bfe_u32", up, lane, "1", "2", pinned=True)
        l16 = s.new('g'); s.valu("v_lshrrev_b32", l16, "4", lane, pinned=True)
        ux = s.new('t'); s.valu("v_xor_b32", ux, up, l16, pinned=True)
        l1 = s.new('t'); s.valu("v_and_b32", l1, "1", lane, pinned=True)
        c1 = s.new('t'); s.valu("v_lshlrev_b32", c1, "4", l1, pinned=True)
        cpart = s.new('t'); s.valu("v_lshl_add_u32", cpart, ux, "5", c1, pinned=True)
        rq = s.new('t'); s.valu("v_mul_u32_u24", rq, "2304", rho, pinned=True)
        s.vdma_q = s.new('vdmaq'); s.valu("v_add_u32", s.vdma_q, rq, cpart, pinned=True)
        s.cpart_needed = True
        s.dma = {}
        def pdma(j):
            for q in range(12):
                m0v, soff, sr = s.dma_params(j, q)
                s.raw(f"s_add_u32 m0, s{S_WV1K}, {m0v}\ns_mov_b32 s{S_SOFF}, {soff}")
                i = s.H('vmem', f"buffer_load_dwordx4 {{0}}, {srd(sr)}, s{S_SOFF} offen lds", [s.vdma_q], [], [s.vdma_q], tag=f'dma{j}.{q}')
                s.dma.setdefault(j, []).append(i)
        s.X = [[VR(f'x{tt}_{ks}', 4, 'a', fixed=(tt * 12 + ks) * 4) for ks in range(12)] for tt in range(4)]
        s.xld = {}
        voff = s.make_voff(True)
        def pxld(ks):
            for tt in range(4):
                nt = " nt" if cfg.x_nt else ""
                i = s.H('vmem', f"buffer_load_dwordx4 {{0}}, {{1}}, {srd(S_X)}, 0 offen offset:{ks*64}{nt}", [s.X[tt][ks], voff[tt]], [s.X[tt][ks]], [voff[tt]], tag=f'x{tt}.{ks}')
                s.xld[(tt, ks)] = i
        dummy = []
        if cfg.prefetch_code:
            s.raw(f"""
            s_getpc_b64 s[{S_PC}:{S_PC+1}]
            L_pc:
            s_mul_i32 s40, s{S_WAVE}, (L_code_end - L_pc) / 4
            """)
            po = s.new('t'); s.valu("v_lshlrev_b32", po, "7", lane, pinned=True)
            po2 = s.new('t'); s.valu("v_add_u32", po2, "s40", po, pinned=True)
            for q in range(cfg.npref):
                pq = s.new('t'); s.valu("v_add_u32", pq, str(q * 8192), po2, pinned=True)
                pm = s.new('t'); s.H('valu', "v_min_u32 {0}, L_code_end - L_pc - 4, {1}", [pm, pq], [pm], [pq])
                pa = s.new('t'); s.valu("v_and_b32", pa, "0xfffffffc", pm, pinned=True)
                d = s.new('dummy'); dummy.append(d)
                s.H('vmem', f"global_load_dword {{0}}, {{1}}, s[{S_PC}:{S_PC+1}]", [d, pa], [d], [pa], tag='pref')
        tid8 = s.new('t'); s.valu("v_lshlrev_b32", tid8, "3", v0, pinned=True)
        rp = s.new('rp', 2)
        irp = s.H('vmem', f"buffer_load_dwordx2 {{0}}, {{1}}, {srd(S_RPB)}, 0 offen", [rp, tid8], [rp], [tid8], tag='rpb')
        pdma(0)
        for ks in range(0, 12): pxld(ks)
        r_ = s.new('t'); s.valu("v_bfe_u32", r_, lane, "2", "2", pinned=True)
        cq = s.new('t'); s.valu("v_and_b32", cq, "3", lane, pinned=True)
        sig = s.new('t'); s.valu("v_lshl_add_u32", sig, l16, "2", r_, pinned=True)
        sw = s.new('t'); s.valu("v_bfe_u32", sw, sig, "1", "2", pinned=True)
        t1 = s.new('t'); s.valu("v_lshlrev_b32", t1, "7", sig, pinned=True)
        t2 = s.new('t'); s.valu("v_lshl_add_u32", t2, sw, "5", t1, pinned=True)
        s.pat0 = s.new('pat0'); s.valu("v_lshl_add_u32", s.pat0, cq, "3", t2, pinned=True)
        n8 = s.new('t'); s.valu("v_and_b32", n8, "7", lane, pinned=True)
        yb = s.new('t'); s.valu("v_bfe_u32", yb, lane, "3", "1", pinned=True)
        g2 = s.new('t'); s.valu("v_lshrrev_b32", g2, "5", lane, pinned=True)
        g1 = s.new('t'); s.valu("v_bfe_u32", g1, lane, "4", "1", pinned=True)
        dy = s.new('t'); s.valu("v_sub_u32", dy, yb, g2, pinned=True)
        dy15 = s.new('t'); s.valu("v_mul_i32_i24", dy15, "15", dy, pinned=True)
        g14 = s.new('t'); s.valu("v_lshlrev_b32", g14, "2", g1, pinned=True)
        dx = s.new('t'); s.valu("v_sub_u32", dx, n8, g14, pinned=True)
        sm = s.new('t'); s.valu("v_add_u32", sm, dy15, dx, pinned=True)
        sm4 = s.new('t'); s.valu("v_lshlrev_b32", sm4, "2", sm, pinned=True)
        const = BIAS_BASE + 4 * (224 - 105 - 7) - 360
        s.vbias = s.new('vbias'); s.valu("v_sub_u32", s.vbias, str(const), sm4, pinned=True)
        xi4 = s.new('t'); s.valu("v_bfe_u32", xi4, lane, "2", "1", pinned=True)
        ne = s.new('t'); s.valu("v_xor_b32", ne, xi4, g1, pinned=True)
        nem = s.new('t'); s.valu("v_sub_u32", nem, "0", ne, pinned=True)
        cm = s.new('t'); s.valu("v_and_b32", cm, f"s{S_LASTCOL}", nem, pinned=True)
        cm2 = s.new('t'); s.valu("v_or_b32", cm2, f"s{S_LASTROW}", cm, pinned=True)
        s.Ma = s.new('mask'); s.valu("v_and_b32", s.Ma, f"0x{f2u(MASKV):08x}", cm, pinned=True)
        s.Mb = s.new('mask'); s.valu("v_and_b32", s.Mb, f"0x{f2u(MASKV):08x}", cm2, pinned=True)
        s.cMa = s.new('mask'); s.valu("v_mul_f32", s.cMa, f"s{S_C}", s.Ma, pinned=True)
        s.cMb = s.new('mask'); s.valu("v_mul_f32", s.cMb, f"s{S_C}", s.Mb, pinned=True)
        if cfg.dump:
            s.vdump = s.new('vdump'); s.valu("v_lshlrev_b32", s.vdump, "4", lane, pinned=True)
            s.raw(f"s_mul_i32 s{S_T+8}, s{S_WIN}, {256*1024}")
        w = s.H('wait', None, needs=[irp]); w.uses = [R(d) for d in []]
        lo0 = s.new('t'); s.valu("v_lshlrev_b32", lo0, "16", rp[0], pinned=True)
        hi0 = s.new('t'); s.valu("v_and_b32", hi0, "0xffff0000", rp[0], pinned=True)
        lo1 = s.new('t'); s.valu("v_lshlrev_b32", lo1, "16", rp[1], pinned=True)
        hi1 = s.new('t'); s.valu("v_and_b32", hi1, "0xffff0000", rp[1], pinned=True)
        vals = []
        for x_ in (lo0, hi0, lo1, hi1):
            y = s.new('t'); s.valu("v_mul_f32", y, f"0x{f2u(1.0/SCALE):08x}", x_, pinned=True); vals.append(y)
        ta = s.new('t'); s.valu("v_lshlrev_b32", ta, "2", v0, pinned=True)
        tb = s.new('t'); s.valu("v_sub_u32", tb, str(BIAS_BASE + 4 * 224), ta, pinned=True)
        s.H('valu', "v_cmp_gt_u32 vcc, 225, {0}", [v0], [], [v0])
        s.raw("s_and_saveexec_b64 s[40:41], vcc")
        dsw = []
        for h in range(4):
            dsw.append(s.H('dsw', f"ds_write_b32 {{0}}, {{1}} offset:{h*1024}", [tb, vals[h]], [], [tb, vals[h]]))
        s.raw("s_mov_b64 exec, s[40:41]")
        s.bias_writes = dsw
        pdma(1); pdma(2)
        s.dummy = dummy
        s.lane_keep = lane

    def dma_params(s, j, q):
        m0v = (j % 3) * SLOT + q * 4096
        mat, p, ks = s.kunit(j, q)
        if mat == 'o': return m0v, ks * 32 * 768 + p * 128, S_WO
        base = {'q': 0, 'k': 768, 'v': 1536}[mat]
        return m0v, ks * 32 * 2304 + base + p * 128, S_W
    GROUPS = [('k',0),('k',1),('q',0),('q',1),('k',2),('q',2),('k',3),('k',4),('q',3),('q',4),('k',5),('q',5)] + [('v',p) for p in range(6)] + [('o',p) for p in range(6)]
    def kunit(s, j, q):
        if s.cfg.phase0 and j < 4:
            mat, p = s.GROUPS[q % 4]
            return mat, p, 3 * j + q // 4
        mat, p = s.GROUPS[j]
        return mat, p, q

    def frag_reads(s, addr, koff, gap, name, same=False):
        F = s.new(name, 4)
        g = gap if same else s.free_gap(gap)
        i1 = s.A('ds', f"ds_read_b64_tr_b16 {{0}}, {{1}} offset:{koff}", [F[0:2], addr], [F[0:2]], [addr], gap=g)
        g = gap if same else s.free_gap(g)
        i2 = s.A('ds', f"ds_read_b64_tr_b16 {{0}}, {{1}} offset:{koff+2048}", [F[2:4], addr], [F[2:4]], [addr], gap=g)
        return F, [i1, i2], g

    def build(s):
        cfg = s.cfg; P = s.P
        s.prologue()
        CH = cfg.chain; NKB = 12 // CH
        blocks = []
        for j, (mat, p) in enumerate(s.GROUPS):
            for u in range(4):
                for kb in range(NKB):
                    blocks.append((j, mat, p, u, kb))
        Kp = {}; Qp = {}; Pp = {}; Op = {}; S = {}
        acc = {}
        pending_aux = []
        addr_cache = {}
        frags = {}
        s.vdma_o = None
        def get_addr(bi, release):
            j, mat, p, u, kb = blocks[bi]
            key = (j, u)
            if key not in addr_cache:
                a = s.new('addr')
                if mat == 'o':
                    E, B = u // 2, u % 2
                    s.valu("v_xor_b32", a, str((j % 3) * SLOT + 64 * E + 8 * B), s.pat_o, release=release)
                else:
                    s.valu("v_xor_b32", a, str((j % 3) * SLOT + 32 * u), s.pat0, release=release)
                addr_cache[key] = a
            return addr_cache[key]
        def issue_reads(bi, gap):
            j, mat, p, u, kb = blocks[bi]
            a = get_addr(bi, gap - 6)
            fl = []; rd = []
            g = gap
            for c in range(CH):
                F, r, g = s.frag_reads(a, (kb * CH + c) * 4096, g, 'frag', same=(bi == 0))
                fl.append(F); rd += r
            frags[bi] = (fl, rd)
        def make_pat_o(release):
            lane = s.lane_consts(False, release)
            kw = dict(release=release)
            g = s.new('t'); s.valu("v_lshrrev_b32", g, "4", lane, **kw)
            r_ = s.new('t'); s.valu("v_bfe_u32", r_, lane, "2", "2", **kw)
            sig = s.new('t'); s.valu("v_lshl_add_u32", sig, g, "2", r_, **kw)
            sw = s.new('t'); s.valu("v_bfe_u32", sw, sig, "1", "2", **kw)
            ch = s.new('t'); s.valu("v_bfe_u32", ch, lane, "1", "1", **kw)
            cx = s.new('t'); s.valu("v_xor_b32", cx, ch, sw, **kw)
            c1 = s.new('t'); s.valu("v_and_b32", c1, "1", lane, **kw)
            t1 = s.new('t'); s.valu("v_lshlrev_b32", t1, "7", sig, **kw)
            t2 = s.new('t'); s.valu("v_lshl_add_u32", t2, cx, "5", t1, **kw)
            s.pat_o = s.new('pato'); s.valu("v_lshl_add_u32", s.pat_o, c1, "4", t2, **kw)
        def make_vdma_o(release):
            lane = s.lane_consts(False, release)
            kw = dict(release=release)
            l8 = s.new('t'); s.valu("v_lshrrev_b32", l8, "3", lane, **kw)
            sg = s.new('t'); s.A('valu', f"v_lshl_add_u32 {{0}}, s{S_WAVE}, 3, {{1}}", [sg, l8], [sg], [l8], **kw)
            up = s.new('t'); s.valu("v_bfe_u32", up, lane, "1", "2", **kw)
            l16 = s.new('t'); s.valu("v_lshrrev_b32", l16, "4", lane, **kw)
            ux = s.new('t'); s.valu("v_xor_b32", ux, up, l16, **kw)
            l1 = s.new('t'); s.valu("v_and_b32", l1, "1", lane, **kw)
            c1 = s.new('t'); s.valu("v_lshlrev_b32", c1, "4", l1, **kw)
            cp = s.new('t'); s.valu("v_lshl_add_u32", cp, ux, "5", c1, **kw)
            rq = s.new('t'); s.valu("v_mul_u32_u24", rq, "768", sg, **kw)
            s.vdma_o = s.new('vdmao'); s.valu("v_add_u32", s.vdma_o, rq, cp, **kw)

        def cvt(d, a, b, **kw): return s.valu("v_cvt_pk_bf16_f32", d, a, b, **kw)
        def cvt_to(dst, a, b):
            if dst.vr.file == 'a':
                t = s.new('ct'); cvt(t, a, b); s.valu("v_accvgpr_write_b32", dst, t)
            else: cvt(dst, a, b)

        def s_block(h, ks):
            first = ks == 0
            if first:
                w = s.A('wait', None, needs=s.bias_rd[h], gap=P.nb)
            for it in range(4):
                for jt in range(4):
                    T = S[(h, jt, it)]
                    s.mfma(T, Kp[(h, jt, ks)], Qp[(h, it, ks)], T, tag=f'S{h}.{ks}')
            if ks == 2:
                for it in range(4):
                    for jt in range(4): s.dump(S[(h, jt, it)], f'S:{h}.{jt}.{it}')
                softmax(h)
        def bias_reads(h, part, gap):
            rd = s.bias_rd.setdefault(h, [])
            g = gap
            tiles = [(it, jt) for it in range(4) for jt in range(4)]
            for (it, jt) in tiles[[0, 6, 11][part]:[6, 11, 16][part]]:
                T = s.new('S', 4); S[(h, jt, it)] = T
                g = s.free_gap(g)
                rd.append(s.A('ds', f"ds_read_b128 {{0}}, {{1}} offset:{h*1024 + 120*(3-(it-jt))}", [T, s.vbias], [T], [s.vbias], gap=g))
        s.bias_rd = {}
        def xreduce(m, op):
            s.perm("v_permlane32_swap_b32", m[0], m[1]); r01 = s.new('sm'); s.valu(op, r01, m[0], m[1])
            s.perm("v_permlane32_swap_b32", m[2], m[3]); r23 = s.new('sm'); s.valu(op, r23, m[2], m[3])
            s.perm("v_permlane16_swap_b32", r01, r23); Rr = s.new('sm'); s.valu(op, Rr, r01, r23)
            return Rr
        def xbcast(A):
            B = s.new('sm'); s.valu("v_mov_b32", B, A)
            s.perm("v_permlane32_swap_b32", A, B)
            A2 = s.new('sm'); s.valu("v_mov_b32", A2, A)
            B2 = s.new('sm'); s.valu("v_mov_b32", B2, B)
            s.perm("v_permlane16_swap_b32", A, A2)
            s.perm("v_permlane16_swap_b32", B, B2)
            return [A, B, A2, B2]
        def softmax(h):
            m = []
            for it in range(4):
                part = []
                for grp in (0, 1):
                    jts = [jt for jt in range(4) if ((jt >= 2) == (it >= 2)) == (grp == 0)]
                    v = [S[(h, jt, it)][r] for jt in jts for r in range(4)]
                    t = s.new('sm'); s.valu("v_max3_f32", t, v[0], v[1], v[2])
                    s.valu("v_max3_f32", t, t, v[3], v[4]); s.valu("v_max3_f32", t, t, v[5], v[6]); s.valu("v_max_f32", t, t, v[7])
                    s.valu("v_add_f32", t, t, s.Ma if grp == 0 else s.Mb)
                    part.append(t)
                mm = s.new('sm'); s.valu("v_max_f32", mm, part[0], part[1]); m.append(mm)
            M = xbcast(xreduce(m, "v_max_f32"))
            l = []
            for it in range(4):
                na = s.new('sm'); s.valu("v_fma_f32", na, M[it], f"s{S_NEGC}", s.cMa)
                nb_ = s.new('sm'); s.valu("v_fma_f32", nb_, M[it], f"s{S_NEGC}", s.cMb)
                acc_ = None
                for jt in range(4):
                    nbv = na if (jt >= 2) == (it >= 2) else nb_
                    T = S[(h, jt, it)]
                    for r in range(4):
                        s.valu("v_fma_f32", T[r], T[r], f"s{S_C}", nbv)
                        s.valu("v_exp_f32", T[r], T[r], kind='trans')
                        if acc_ is None:
                            first = T[r]; acc_ = 0
                        elif acc_ == 0:
                            acc_ = s.new('sm'); s.valu("v_add_f32", acc_, first, T[r])
                        else:
                            s.valu("v_add_f32", acc_, acc_, T[r])
                l.append(acc_)
            Rr = xreduce(l, "v_add_f32")
            s.valu("v_rcp_f32", Rr, Rr, kind='trans')
            I = xbcast(Rr)
            for it in range(4):
                for s2 in range(2):
                    Pt = s.new('P', 4, 'a' if h < 2 else 'v'); Pp[(h, it, s2)] = Pt
                    for half in range(2):
                        T = S[(h, 2 * s2 + half, it)]
                        for r in range(4): s.valu("v_mul_f32", T[r], T[r], I[it])
                        cvt_to(Pt[2 * half], T[0], T[1]); cvt_to(Pt[2 * half + 1], T[2], T[3])
                    s.dump(Pt, f'P:{h}.{it}.{s2}')
        def pv_block(h, ct, Vt):
            Oacc = [s.new('Oacc', 4) for _ in range(4)]
            for it in range(4):
                for s2 in range(2):
                    s.mfma(Oacc[it], Vt[s2], Pp[(h, it, s2)], Oacc[it] if s2 else None, tag=f'PV{h}.{ct}')
            ks = 3 * h + ct // 2
            for it in range(4):
                if (ks, it) not in Op:
                    Op[(ks, it)] = s.new('O', 4, s.ofile(h, ct, it))
                T = Op[(ks, it)]
                cvt_to(T[2 * (ct % 2)], Oacc[it][0], Oacc[it][1]); cvt_to(T[2 * (ct % 2) + 1], Oacc[it][2], Oacc[it][3])
                if ct % 2: s.dump(T, f'O:{ks}.{it}')

        def finish_col(j, mat, p, u, A_, bi):
            cg = 4 * p + u
            if mat in 'kq':
                h, ct = cg // 6, cg % 6
                D = Kp if mat == 'k' else Qp
                for tt in range(4):
                    key = (h, tt, ct // 2)
                    if key not in D: D[key] = s.new('K' if mat == 'k' else 'Q', 4)
                    T = D[key]
                    cvt(T[2 * (ct % 2)], A_[tt][0], A_[tt][1]); cvt(T[2 * (ct % 2) + 1], A_[tt][2], A_[tt][3])
                    if ct % 2: s.dump(T, f'{mat.upper()}:{h}.{tt}.{ct//2}')
                if mat == 'q' and ct % 2:
                    ks = ct // 2
                    due = bi + 2
                    if h % 2 == 1 and ks == 0:
                        s.held_s = (h, 0)
                    else:
                        if h % 2 == 1 and ks == 1:
                            pending_aux.append((due, lambda h=h: s_block(h, 0)))
                            pending_aux.append((-due, lambda h=h, gap=None: None))
                        pending_aux.append((due, lambda h=h, ks=ks: s_block(h, ks)))
            elif mat == 'v':
                h, ct = cg // 6, cg % 6
                Vt = [s.new('Vp', 4) for _ in range(2)]
                for s2 in range(2):
                    for half in range(2):
                        a = A_[2 * s2 + half]
                        cvt(Vt[s2][2 * half], a[0], a[1]); cvt(Vt[s2][2 * half + 1], a[2], a[3])
                    s.dump(Vt[s2], f'V:{h}.{ct}.{s2}')
                if h == 3 and cfg.defer_pv3:
                    s.deferred.append(lambda h=h, ct=ct, Vt=Vt: pv_block(h, ct, Vt))
                else:
                    pending_aux.append((bi + 2, lambda h=h, ct=ct, Vt=Vt: pv_block(h, ct, Vt)))
            else:
                E, B = u // 2, u % 2
                if B == 0: s.outT = [s.new('out', 4) for _ in range(4)]
                for tt in range(4):
                    T = s.outT[tt]
                    cvt(T[2 * B], A_[tt][0], A_[tt][1]); cvt(T[2 * B + 1], A_[tt][2], A_[tt][3])
                    if B == 1:
                        s.A('vmem', f"buffer_store_dwordx4 {{0}}, {{1}}, {srd(S_OUT)}, 0 offen offset:{64*(2*p+E)}", [T, s.voff_o[tt]], [], [T, s.voff_o[tt]], store=True)
        s.deferred = []
        bias_at = {}
        for bi, (j, mat, p, u, kb) in enumerate(blocks):
            if mat == 'q' and kb == NKB - 1:
                cg = 4 * p + u; h, ct = cg // 6, cg % 6
                if (h % 2 == 0 and ct == 1) or (h % 2 == 1 and ct == 3):
                    for part in range(3): bias_at[bi - 1 + part] = (h, part)
        nblk = len(blocks)
        w0 = s.A('wait', None, needs=s.dma[0] + s.bias_writes, gap=0)
        w0.uses = [R(d) for d in s.dummy]
        b0 = s.A('bar', "s_barrier", gap=0, after=[w0])
        issue_reads(0, 0)
        last_bar = b0
        for r in frags[0][1]: r.preds[b0] = 0
        for bi, (j, mat, p, u, kb) in enumerate(blocks):
            for (due, fn) in [x for x in pending_aux if x[0] == bi]: fn()
            pending_aux[:] = [x for x in pending_aux if x[0] != bi and x[0] >= 0]
            if mat == 'o' and u == 0 and kb == 0 and p == 0:
                for fn in s.deferred: fn()
                s.deferred = []
            m0 = P.nb
            fl, rd = frags.pop(bi)
            needs = list(rd)
            lastblk_of_group = (u == 3 and kb == NKB - 1)
            if j == 0 and u == 0:
                needs += [s.xld[(tt, ks)] for tt in range(4) for ks in range(kb * CH, kb * CH + CH)]
            bar = None
            if lastblk_of_group and j + 1 < len(s.GROUPS):
                needs += s.dma[j + 1]
            w = s.A('wait', None, needs=needs, gap=m0)
            if lastblk_of_group and j + 1 < len(s.GROUPS):
                bar = s.A('bar', "s_barrier", gap=m0, after=[w])
            if bi + 1 < nblk:
                nj, nmat = blocks[bi + 1][0], blocks[bi + 1][1]
                if nmat == 'o' and not hasattr(s, 'pat_o'): make_pat_o(m0 - 40)
                issue_reads(bi + 1, m0 + 1)
                if bar is not None:
                    for r in frags[bi + 1][1]: r.preds[bar] = 0
            if bar is not None: s.dma_next = [j + 3, 0, bar]
            if getattr(s, 'dma_next', None) and s.dma_next[0] < len(s.GROUPS) and s.dma_next[1] < 12:
                jn, q, bb = s.dma_next
                m0v, soff, sr = s.dma_params(jn, q)
                if sr == S_WO and s.vdma_o is None: make_vdma_o(m0 - 30)
                vd = s.vdma_o if sr == S_WO else s.vdma_q
                g0 = m0 + 10
                i1 = s.A('salu', f"s_add_u32 m0, s{S_WV1K}, {m0v}", gap=g0)
                i2 = s.A('salu', f"s_mov_b32 s{S_SOFF}, {soff}", gap=g0 + 1)
                gd = s.free_gap(g0 + 2)
                i3 = s.A('vmem', f"buffer_load_dwordx4 {{0}}, {srd(sr)}, s{S_SOFF} offen lds", [vd], [], [vd], gap=gd, after=[i1, i2, bb], tag=f'dma{jn}.{q}')
                s.dma.setdefault(jn, []).append(i3)
                s.dma_next[1] += 1
            if bi in bias_at: bias_reads(bias_at[bi][0], bias_at[bi][1], m0 + 9)
            if mat == 'o' and not hasattr(s, 'voff_o'): s.voff_o = s.make_voff(False, m0)
            if kb == 0: acc[(j, u)] = [s.new('acc', 4) for _ in range(4)]
            A_ = acc[(j, u)]
            for tt in range(4):
                for c in range(CH):
                    ks = kb * CH + c
                    C = None if ks == 0 else A_[tt]
                    if mat in 'kq': s.mfma(A_[tt], fl[c], s.X[tt][ks], C, tag=f'{mat}{p}.{u}')
                    elif mat == 'v': s.mfma(A_[tt], s.X[tt][ks], fl[c], C, tag=f'v{p}.{u}')
                    else: s.mfma(A_[tt], fl[c], Op[(ks, tt)], C, tag=f'o{p}.{u}')
            if kb == NKB - 1: finish_col(j, mat, p, u, A_, bi)
        for (due, fn) in pending_aux: fn()
        s.P.pin_tail(Ins('salu', "L_end:"))
    def ofile(s, h, ct, it):
        if h in (1, 2) and ct // 2 < 2: return 'a'
        return 'v'

HDR = """; window attention (Swin, shifted windows), one window per wave, 4 windows per workgroup
; @launch grid=(256,1,1) block=(256,1,1) lds={lds}
.amdgcn_target "amdgcn-amd-amdhsa--gfx950"
.text
.globl standalone__window_attn_swin__vision_kernel
.p2align 8
.type standalone__window_attn_swin__vision_kernel,@function
standalone__window_attn_swin__vision_kernel:
"""
FTR = """
s_endpgm
L_code_end:
.section .rodata,"a"
.p2align 6
.amdhsa_kernel standalone__window_attn_swin__vision_kernel
  .amdhsa_next_free_vgpr 512
  .amdhsa_next_free_sgpr 96
  .amdhsa_accum_offset 256
  .amdhsa_group_segment_fixed_size 0
  .amdhsa_kernarg_size 72
  .amdhsa_user_sgpr_count 2
  .amdhsa_user_sgpr_kernarg_segment_ptr 1
  .amdhsa_system_sgpr_workgroup_id_x 1
  .amdhsa_float_denorm_mode_32 3
.end_amdhsa_kernel
"""
def generate(cfg, path):
    cfg.npref = getattr(cfg, 'npref', 4)
    k = K(cfg); k.build()
    out = schedule(k.P)
    insert_waits(out)
    check_waits(out)
    allocate(out)
    bad = check_hazards(out)
    if bad:
        print("HAZARDS:", len(bad), bad[:10])
        raise SystemExit(1)
    txt = HDR.format(lds=LDS_BYTES)
    for i in out:
        t = i.text()
        txt += ("" if t.endswith(":") else "    ") + t + "\n"
    txt += FTR
    open(path, "w").write(txt)
    return k, out

if __name__ == "__main__":
    import argparse
    ap = argparse.ArgumentParser()
    ap.add_argument("-o", default="standalone__window_attn_swin__vision.s")
    ap.add_argument("--dump", default=None)
    ap.add_argument("--set", action="append", default=[])
    a = ap.parse_args()
    cfg = Cfg()
    if a.dump: cfg.dump = set(a.dump.split(","))
    for kv in a.set:
        k_, v_ = kv.split("="); setattr(cfg, k_, eval(v_))
    k, out = generate(cfg, a.o)
    if a.dump:
        import json; json.dump(k.dumps, open(a.o + ".dumps.json", "w"))
```

```python
HDR = """; @launch grid=({grid},1,1) block=({block},1,1) lds={lds}
.amdgcn_target "amdgcn-amd-amdhsa--gfx950"
.text
.globl standalone__window_attn_swin__vision_kernel
.p2align 8
.type standalone__window_attn_swin__vision_kernel,@function
standalone__window_attn_swin__vision_kernel:
"""
FTR = """
s_endpgm
.section .rodata,"a"
.p2align 6
.amdhsa_kernel standalone__window_attn_swin__vision_kernel
  .amdhsa_next_free_vgpr {nv}
  .amdhsa_next_free_sgpr 102
  .amdhsa_accum_offset {acc}
  .amdhsa_group_segment_fixed_size 0
  .amdhsa_kernarg_size 72
  .amdhsa_user_sgpr_count 2
  .amdhsa_user_sgpr_kernarg_segment_ptr 1
  .amdhsa_system_sgpr_workgroup_id_x 1
.end_amdhsa_kernel
"""
def prologue(nwg):
    return f"""
    s_cmp_ge_u32 s2, {nwg}
    s_cbranch_scc1 L_end
    s_load_dwordx4 s[4:7], s[0:1], 0
    s_load_dwordx4 s[8:11], s[0:1], 16
    s_load_dwordx2 s[12:13], s[0:1], 48
    s_load_dwordx2 s[14:15], s[0:1], 64
    s_waitcnt lgkmcnt(0)
"""
def stamp_start():
    return """
    s_memtime s[20:21]
    s_memrealtime s[22:23]
    s_waitcnt lgkmcnt(0)
"""
def stamp_end(vtmp=0):
    v = vtmp
    return f"""
    s_memtime s[24:25]
    s_memrealtime s[26:27]
    s_waitcnt lgkmcnt(0)
    s_lshl_b32 s31, s30, 5
    v_mov_b32 v{v}, s20
    v_mov_b32 v{v+1}, s21
    v_mov_b32 v{v+2}, s24
    v_mov_b32 v{v+3}, s25
    v_mov_b32 v{v+4}, s22
    v_mov_b32 v{v+5}, s23
    v_mov_b32 v{v+6}, s26
    v_mov_b32 v{v+7}, s27
    v_mov_b32 v{v+8}, s31
    s_mov_b64 exec, 1
    global_store_dwordx4 v{v+8}, v[{v}:{v+3}], s[14:15]
    global_store_dwordx4 v{v+8}, v[{v+4}:{v+7}], s[14:15] offset:16
    s_waitcnt vmcnt(0)
"""
def waveid(nw):
    return f"""
    v_lshrrev_b32 v1, 6, v0
    s_nop 1
    v_readfirstlane_b32 s29, v1
    s_nop 3
    s_mul_i32 s30, s2, {nw}
    s_add_u32 s30, s30, s29
"""
```

```python
import sys
sys.path.insert(0, "exp")
from common import *
def gen(name, segs, iters=16, per=64, nwaves=4, lds=65536, chain=4, extra_pre=""):
    nseg = len(segs); assert nseg <= 14
    o = HDR.format(grid=256, block=64*nwaves, lds=lds)
    o += prologue(256) + waveid(nwaves)
    o += """
    v_lshlrev_b32 v2, 4, v0
    v_add_u32 v2, 2048, v2
    s_lshl_b32 s16, s2, 14
    v_add_u32 v3, s16, v2
"""
    for i in range(4):
        o += f"    global_load_dwordx4 v[{8+4*i}:{11+4*i}], v3, s[4:5] offset:{i*1024-2048}\n"
    o += "    v_add_u32 v3, 8192, v3\n"
    for i in range(4):
        o += f"    global_load_dwordx4 v[{96+4*i}:{99+4*i}], v3, s[4:5] offset:{i*1024-2048}\n"
    o += "    s_waitcnt vmcnt(0)\n"
    for r in range(32, 96): o += f"    v_mov_b32 v{r}, 0\n"
    for r in range(24, 32): o += f"    v_mov_b32 v{r}, 1.0\n"
    for r in range(112, 256): o += f"    v_mov_b32 v{r}, 0\n"
    o += """
    v_and_b32 v5, 63, v0
    v_lshlrev_b32 v7, 3, v5
    v_lshlrev_b32 v6, 2, v5
    v_lshlrev_b32 v5, 4, v5
    s_mov_b32 s60, s6
    s_mov_b32 s61, s7
    s_mov_b32 s62, 884736
    s_mov_b32 s63, 0x20000
    s_mov_b32 s64, 0
    s_mov_b32 m0, 32768
"""
    o += extra_pre
    o += "    s_memtime s[36:37]\n    s_memrealtime s[38:39]\n"
    o += "    s_lshl_b32 s31, s30, 8\n"
    def stamp(k):
        return (f"    s_waitcnt lgkmcnt(0)\n    v_mov_b32 v0, s36\n    v_mov_b32 v1, s37\n    v_mov_b32 v2, s38\n    v_mov_b32 v3, s39\n    v_mov_b32 v4, s31\n"
                f"    s_mov_b64 exec, 1\n    global_store_dwordx4 v4, v[0:3], s[14:15] offset:{16*k}\n    s_mov_b64 exec, -1\n    s_waitcnt vmcnt(0)\n")
    for k, fil in enumerate(segs):
        o += stamp(k)
        o += "    s_barrier\n    s_memtime s[40:41]\n    s_memrealtime s[42:43]\n    s_waitcnt lgkmcnt(0)\n"
        o += f"    s_mov_b32 s17, {iters}\nL_loop{k}:\n"
        for i in range(per):
            ai, bi, ci = (i % 4, (i + i // 4) % 4, i // chain)
            a = 32 + (ci % 16) * 4
            o += f"    v_mfma_f32_16x16x32_bf16 v[{a}:{a+3}], v[{8+4*ai}:{11+4*ai}], v[{96+4*bi}:{99+4*bi}], v[{a}:{a+3}]\n"
            o += fil(i)
        o += f"    s_sub_u32 s17, s17, 1\n    s_cmp_lg_u32 s17, 0\n    s_cbranch_scc1 L_loop{k}\n"
        o += "    s_waitcnt vmcnt(0) lgkmcnt(0)\n    s_memtime s[36:37]\n    s_memrealtime s[38:39]\n    s_waitcnt lgkmcnt(0)\n"
        o += f"    s_sub_u32 s44, s36, s40\n    v_mov_b32 v0, s44\n    s_lshl_b32 s45, s30, 6\n    s_add_u32 s45, s45, {0x100000 + 4*k}\n    v_mov_b32 v4, s45\n"
        o += f"    s_mov_b64 exec, 1\n    global_store_dword v4, v0, s[14:15]\n    s_mov_b64 exec, -1\n    s_waitcnt vmcnt(0)\n"
    o += stamp(nseg)
    o += "L_end:\n"
    o += FTR.format(nv=512, acc=256)
    open(f"exp/{name}.s", "w").write(o)
def V(i, j=0, kind="fma"):
    r = 24 + (i + j) % 8
    if kind == "fma": return f"    v_fma_f32 v{r}, v{8 + (i+j) % 16}, v{96 + (i + j) % 16}, v{r}\n"
    if kind == "add": return f"    v_add_f32 v{r}, v{8 + (i+j) % 16}, v{r}\n"
    if kind == "exp": return f"    v_exp_f32 v{r}, v{8 + (i+j) % 16}\n"
    if kind == "cvt": return f"    v_cvt_pk_bf16_f32 v{r}, v{8 + (i+j) % 16}, v{96 + (i + j) % 16}\n"
    if kind == "max3": return f"    v_max3_f32 v{r}, v{8 + (i+j) % 16}, v{96 + (i + j) % 16}, v{r}\n"
    if kind == "pkmul": return f"    v_pk_mul_f32 v[{24 + 2*((i+j)%4)}:{25 + 2*((i+j)%4)}], v[{8 + 2*((i+j) % 8)}:{9 + 2*((i+j) % 8)}], v[{96 + 2*((i+j) % 8)}:{97 + 2*((i+j) % 8)}]\n"
    if kind == "pkfma": return f"    v_pk_fma_f32 v[{24 + 2*((i+j)%4)}:{25 + 2*((i+j)%4)}], v[{8 + 2*((i+j) % 8)}:{9 + 2*((i+j) % 8)}], v[{96 + 2*((i+j) % 8)}:{97 + 2*((i+j) % 8)}], v[{24 + 2*((i+j)%4)}:{25 + 2*((i+j)%4)}]\n"
    if kind == "accw": return f"    v_accvgpr_write_b32 a{(i+j) % 64}, v{8 + (i+j) % 16}\n"
    if kind == "accr": return f"    v_accvgpr_read_b32 v{r}, a{(i+j) % 64}\n"
    if kind == "mov": return f"    v_mov_b32 v{r}, v{8 + (i+j) % 16}\n"
def S(i): return "    s_add_u32 s18, s18, 1\n"
def D(i, j=0, kind="tr"):
    if kind == "tr":
        d = 144 + 2 * ((2*i + j) % 16); return f"    ds_read_b64_tr_b16 v[{d}:{d+1}], v7 offset:{((2*i+j) % 32) * 512}\n"
    if kind == "b128":
        d = 144 + 4 * ((2*i+j) % 8); return f"    ds_read_b128 v[{d}:{d+3}], v5 offset:{((2*i+j) % 32) * 1024}\n"
    if kind == "b32":
        d = 144 + ((2*i+j) % 16); return f"    ds_read_b32 v{d}, v6 offset:{((2*i+j) % 32) * 256}\n"
    if kind == "w128":
        return f"    ds_write_b128 v5, v[8:11] offset:{((2*i+j) % 32) * 1024}\n"
def W(i, n=6, per=4): return f"    s_waitcnt lgkmcnt({n})\n" if i % per == per - 1 else ""
def WW(n=8): return f"    s_waitcnt lgkmcnt({n})\n"
def DMA(i): return f"    buffer_load_dwordx4 v5, s[60:63], s64 offen lds\n"
```

```python
from seglib import *
DP = lambda i, r=24, q=9: f"    v_mov_b32_dpp v{r}, v{q} row_ror:8 row_mask:0xf bank_mask:0xc\n"
gen("dp1", [
 lambda i: "",
 lambda i: DP(i),
 lambda i: DP(i) + DP(i, 25, 10),
 lambda i: D(i) + DP(i) + W(i, 6, 16),
 lambda i: DP(i) + V(i),
 lambda i: V(i) + DP(i, 200, 11),
 lambda i: (DP(i) + DP(i, 25, 10)) if i % 2 else "",
 lambda i: "    v_mov_b32 v26, v27\n" + DP(i, 28, 12),
 lambda i: "    v_permlane32_swap_b32 v24, v25\n    v_permlane32_swap_b32 v26, v27\n",
 lambda i: D(i) + "    v_permlane32_swap_b32 v24, v25\n" + W(i, 6, 16),
 lambda i: "    v_accvgpr_read_b32 v24, a3\n    v_accvgpr_read_b32 v25, a4\n",
 lambda i: "    v_cvt_pk_bf16_f32 v24, v9, v10\n" + DP(i, 28, 12),
 lambda i: "    s_waitcnt lgkmcnt(0)\n" + DP(i) + DP(i, 25, 10),
 lambda i: "    s_cbranch_vccnz L_end\n" if i % 16 == 0 else "",
], extra_pre="    s_mov_b64 vcc, 0\n")
```
